```python
import torch

def _softmax(x, axis=-1):
    return torch.softmax(x, dim=axis)
def _gelu(x):
    return torch.nn.functional.gelu(x, approximate="tanh")
def _silu(x):
    return torch.nn.functional.silu(x)
def _sigmoid(x):
    return torch.sigmoid(x)
def _layernorm(x, axis=-1, eps=1e-5):
    m = x.mean(dim=axis, keepdim=True)
    v = x.var(dim=axis, keepdim=True, unbiased=False)
    return (x - m) / torch.sqrt(v + eps)
def _scatter_add(tgt, idx, src, axis=0):
    return tgt.clone().index_add_(axis, idx, src)
def _segment_sum(src, seg, n):
    out = torch.zeros((n,) + src.shape[1:], dtype=src.dtype)
    return out.index_add_(0, seg, src)
def _pad(x, pw):
    flat = tuple(v for pair in reversed(pw) for v in pair)
    return torch.nn.functional.pad(x, flat)

kernel_name = 'standalone__instancenorm__prompt'

def setup_inputs():

    _w = (lambda a: (lambda t: t.to(torch.bfloat16) if t.is_floating_point() else t)(torch.as_tensor(a)))
    B, C, H, W = 2, 448, 2048, 16
    return {
        "x": _w(abs((lambda *s: torch.randn(*s, dtype=torch.bfloat16) * 0.05)(B, C, H, W))),
        "g": _w((lambda *s: torch.randn(*s, dtype=torch.bfloat16) * 0.05)(C) + 1.0),
        "b": _w((lambda *s: torch.randn(*s, dtype=torch.bfloat16) * 0.4)(C)),
    }

def reference(x, g, b):
    mu = x.mean(axis=(-2, -1), keepdims=True)
    var = ((x - mu) ** 2).mean(axis=(-2, -1), keepdims=True)
    xhat = (x - mu) / torch.sqrt(var + 1e-5)
    return xhat * g.reshape(1, -1, 1, 1) + b.reshape(1, -1, 1, 1)
```

```python
import sys

HEADER = """; Kernarg layout for this problem (48 bytes, ptrs only, base s[0:1]):
"""

def gen(T=256):
    NINST = 896
    NELEM = 32768
    NW = T // 64
    ND = NELEM // 2 // T
    NL = ND // 4
    step = T * 16
    lds = 2 * max(NW, 4) * 4
    D0 = 4
    TMP = D0 + ND
    nvgpr = TMP + 16
    o = []
    a = o.append
    a(HEADER + f"; @launch grid=({NINST},1,1) block=({T},1,1) lds={lds}")
    a('.amdgcn_target "amdgcn-amd-amdhsa--gfx950"')
    a(".text")
    a(".globl standalone__instancenorm__prompt_kernel")
    a(".p2align 8")
    a(".type standalone__instancenorm__prompt_kernel,@function")
    a("standalone__instancenorm__prompt_kernel:")
    a(f"    s_cmp_ge_u32 s2, {NINST}")
    a("    s_cbranch_scc1 L_end")
    a("    s_load_dwordx4 s[4:7], s[0:1], 0        ; x -> s[4:5], g -> s[6:7]")
    a("    s_load_dwordx4 s[8:11], s[0:1], 16      ; b -> s[8:9], out -> s[10:11]")
    a("    v_lshlrev_b32 v1, 4, v0")
    a("    v_lshrrev_b32 v2, 6, v0")
    a("    v_lshlrev_b32 v2, 2, v2")
    a("    v_mov_b32 v3, 0")
    a("    s_lshl_b32 s20, s2, 16")
    a("    s_sub_u32 s21, s2, 448")
    a("    s_cmp_ge_u32 s2, 448")
    a("    s_cselect_b32 s21, s21, s2              ; channel c")
    a("    s_lshr_b32 s22, s21, 1")
    a("    s_lshl_b32 s22, s22, 2")
    a("    s_waitcnt lgkmcnt(0)")
    a("    s_add_u32 s12, s4, s20")
    a("    s_addc_u32 s13, s5, 0")
    a("    s_and_b32 s13, s13, 0xffff")
    a("    s_mov_b32 s14, 65536")
    a("    s_mov_b32 s15, 0x00020000")
    a("    s_add_u32 s16, s10, s20")
    a("    s_addc_u32 s17, s11, 0")
    a("    s_and_b32 s17, s17, 0xffff")
    a("    s_mov_b32 s18, 65536")
    a("    s_mov_b32 s19, 0x00020000")
    a("    s_load_dword s23, s[6:7], s22           ; g pair")
    a("    s_load_dword s24, s[8:9], s22           ; b pair")
    SOFF = 32
    for i in range(NL):
        a(f"    s_mov_b32 s{SOFF+i}, {i*step}")
    for i in range(NL):
        a(f"    buffer_load_dwordx4 v[{D0+4*i}:{D0+4*i+3}], v1, s[12:15], s{SOFF+i} offen")
    ACC = TMP
    T0 = TMP + 4
    T1 = TMP + 6
    NM = TMP + 8
    SC = TMP + 10
    SH = TMP + 12
    RD = TMP + 4
    assert TMP % 4 == 0
    def zero_acc():
        for j in range(4):
            a(f"    v_mov_b32 v{ACC+j}, 0")
    def wave_reduce_to_lds(off):
        a(f"    v_add_f32 v{ACC}, v{ACC}, v{ACC+1}")
        a(f"    v_add_f32 v{ACC+2}, v{ACC+2}, v{ACC+3}")
        a(f"    v_add_f32 v{ACC}, v{ACC}, v{ACC+2}")
        for ctl in ["row_shr:1 row_mask:0xf bank_mask:0xf", "row_shr:2 row_mask:0xf bank_mask:0xf",
                    "row_shr:4 row_mask:0xf bank_mask:0xf", "row_shr:8 row_mask:0xf bank_mask:0xf",
                    "row_bcast:15 row_mask:0xa bank_mask:0xf", "row_bcast:31 row_mask:0xc bank_mask:0xf"]:
            a("    s_nop 1")
            a(f"    v_add_f32_dpp v{ACC}, v{ACC}, v{ACC} {ctl}")
        a("    s_mov_b32 exec_lo, 0")
        a("    s_mov_b32 exec_hi, 0x80000000")
        a(f"    ds_write_b32 v2, v{ACC} offset:{off}")
        a("    s_mov_b64 exec, -1")
        a("    s_waitcnt lgkmcnt(0)")
        a("    s_barrier")
    def lds_total(off):
        nrd = (NW + 3) // 4
        if NW < 4:
            raise ValueError
        first = True
        for k in range(nrd):
            dst = RD if k == 0 else SC
            a(f"    ds_read_b128 v[{dst}:{dst+3}], v3 offset:{off+16*k}")
            a("    s_waitcnt lgkmcnt(0)")
            a(f"    v_add_f32 v{dst}, v{dst}, v{dst+1}")
            a(f"    v_add_f32 v{dst+2}, v{dst+2}, v{dst+3}")
            a(f"    v_add_f32 v{dst}, v{dst}, v{dst+2}")
            if k > 0:
                a(f"    v_add_f32 v{RD}, v{RD}, v{dst}")
    zero_acc()
    for i in range(NL):
        a(f"    s_waitcnt vmcnt({NL-1-i})")
        for j in range(4):
            d = D0 + 4*i + j
            t = T0 if j % 2 == 0 else T1
            a(f"    v_lshlrev_b32 v{t}, 16, v{d}")
            a(f"    v_and_b32 v{t+1}, 0xffff0000, v{d}")
            acc = ACC + 2*(j % 2)
            a(f"    v_pk_add_f32 v[{acc}:{acc+1}], v[{acc}:{acc+1}], v[{t}:{t+1}]")
    wave_reduce_to_lds(0)
    lds_total(0)
    a(f"    v_mul_f32 v{NM}, 0xb8000000, v{RD}")
    a(f"    v_mov_b32 v{NM+1}, v{NM}")
    zero_acc()
    for i in range(ND):
        d = D0 + i
        t = T0 if i % 2 == 0 else T1
        acc = ACC + 2*(i % 2)
        a(f"    v_lshlrev_b32 v{t}, 16, v{d}")
        a(f"    v_and_b32 v{t+1}, 0xffff0000, v{d}")
        a(f"    v_pk_add_f32 v[{t}:{t+1}], v[{t}:{t+1}], v[{NM}:{NM+1}]")
        a(f"    v_pk_fma_f32 v[{acc}:{acc+1}], v[{t}:{t+1}], v[{t}:{t+1}], v[{acc}:{acc+1}]")
    off2 = max(NW, 4) * 4
    wave_reduce_to_lds(off2)
    lds_total(off2)
    a("    s_lshl_b32 s26, s23, 16")
    a("    s_and_b32 s27, s23, 0xffff0000")
    a("    s_lshl_b32 s28, s24, 16")
    a("    s_and_b32 s29, s24, 0xffff0000")
    a("    s_and_b32 s25, s21, 1")
    a("    s_cmp_eq_u32 s25, 1")
    a("    s_cselect_b32 s26, s27, s26             ; g as f32")
    a("    s_cselect_b32 s28, s29, s28             ; b as f32")
    a(f"    v_mov_b32 v{T1}, 0x3727c5ac             ; eps = 1e-5f")
    a(f"    v_fmac_f32 v{T1}, 0x38000000, v{RD}")
    a(f"    v_rsq_f32 v{T1}, v{T1}")
    a("    s_nop 0")
    a(f"    v_mul_f32 v{SC}, s26, v{T1}")
    a(f"    v_mov_b32 v{SC+1}, v{SC}")
    a(f"    v_mov_b32 v{SH}, s28")
    a(f"    v_mov_b32 v{SH+1}, s28")
    for i in range(NL):
        for j in range(4):
            d = D0 + 4*i + j
            t = T0 if j % 2 == 0 else T1
            a(f"    v_lshlrev_b32 v{t}, 16, v{d}")
            a(f"    v_and_b32 v{t+1}, 0xffff0000, v{d}")
            a(f"    v_pk_add_f32 v[{t}:{t+1}], v[{t}:{t+1}], v[{NM}:{NM+1}]")
            a(f"    v_pk_fma_f32 v[{t}:{t+1}], v[{t}:{t+1}], v[{SC}:{SC+1}], v[{SH}:{SH+1}]")
            a(f"    v_cvt_pk_bf16_f32 v{d}, v{t}, v{t+1}")
        a(f"    buffer_store_dwordx4 v[{D0+4*i}:{D0+4*i+3}], v1, s[16:19], s{SOFF+i} offen")
    a("L_end:")
    a("    s_endpgm")
    a('.section .rodata,"a"')
    a(".p2align 6")
    a(".amdhsa_kernel standalone__instancenorm__prompt_kernel")
    a(f"  .amdhsa_next_free_vgpr {nvgpr}")
    a(f"  .amdhsa_next_free_sgpr {max(SOFF+NL, 40)}")
    a(f"  .amdhsa_accum_offset {(nvgpr+3)//4*4}")
    a("  .amdhsa_group_segment_fixed_size 0")
    a("  .amdhsa_kernarg_size 48")
    a("  .amdhsa_user_sgpr_count 2")
    a("  .amdhsa_user_sgpr_kernarg_segment_ptr 1")
    a("  .amdhsa_system_sgpr_workgroup_id_x 1")
    a(".end_amdhsa_kernel")
    return "\n".join(o) + "\n"

if __name__ == "__main__":
    T = int(sys.argv[1]) if len(sys.argv) > 1 else 256
    out = sys.argv[2] if len(sys.argv) > 2 else "standalone__instancenorm__prompt.s"
    open(out, "w").write(gen(T))
    print("wrote", out)
```

```python
import sys

HEADER = """; Kernarg layout for this problem (48 bytes, ptrs only, base s[0:1]):
"""

def gen(T=256, lf="", sf=""):
    NINST = 896
    NELEM = 32768
    NW = T // 64
    ND = NELEM // 2 // T
    NL = ND // 4
    step = T * 16
    lds = 2 * max(NW, 4) * 4
    D0 = 4
    TMP = D0 + ND
    nvgpr = TMP + 16
    o = []
    a = o.append
    a(HEADER + f"; @launch grid=({NINST},1,1) block=({T},1,1) lds={lds}")
    a('.amdgcn_target "amdgcn-amd-amdhsa--gfx950"')
    a(".text")
    a(".globl standalone__instancenorm__prompt_kernel")
    a(".p2align 8")
    a(".type standalone__instancenorm__prompt_kernel,@function")
    a("standalone__instancenorm__prompt_kernel:")
    a(f"    s_cmp_ge_u32 s2, {NINST}")
    a("    s_cbranch_scc1 L_end")
    a("    s_load_dwordx4 s[4:7], s[0:1], 0        ; x -> s[4:5], g -> s[6:7]")
    a("    s_load_dwordx4 s[8:11], s[0:1], 16      ; b -> s[8:9], out -> s[10:11]")
    a("    v_lshlrev_b32 v1, 4, v0")
    a("    v_lshrrev_b32 v2, 6, v0")
    a("    v_lshlrev_b32 v2, 2, v2")
    a("    v_mov_b32 v3, 0")
    a("    s_lshl_b32 s20, s2, 16")
    a("    s_sub_u32 s21, s2, 448")
    a("    s_cmp_ge_u32 s2, 448")
    a("    s_cselect_b32 s21, s21, s2              ; channel c")
    a("    s_lshr_b32 s22, s21, 1")
    a("    s_lshl_b32 s22, s22, 2")
    a("    s_waitcnt lgkmcnt(0)")
    a("    s_add_u32 s12, s4, s20")
    a("    s_addc_u32 s13, s5, 0")
    a("    s_and_b32 s13, s13, 0xffff")
    a("    s_mov_b32 s14, 65536")
    a("    s_mov_b32 s15, 0x00020000")
    a("    s_add_u32 s16, s10, s20")
    a("    s_addc_u32 s17, s11, 0")
    a("    s_and_b32 s17, s17, 0xffff")
    a("    s_mov_b32 s18, 65536")
    a("    s_mov_b32 s19, 0x00020000")
    a("    s_load_dword s23, s[6:7], s22           ; g pair")
    a("    s_load_dword s24, s[8:9], s22           ; b pair")
    SOFF = 32
    for i in range(NL):
        a(f"    s_mov_b32 s{SOFF+i}, {i*step}")
    for i in range(NL):
        a(f"    buffer_load_dwordx4 v[{D0+4*i}:{D0+4*i+3}], v1, s[12:15], s{SOFF+i} offen {lf}")
    ACC = TMP
    T0 = TMP + 4
    T1 = TMP + 6
    NM = TMP + 8
    SC = TMP + 10
    SH = TMP + 12
    RD = TMP + 4
    assert TMP % 4 == 0
    def zero_acc():
        for j in range(4):
            a(f"    v_mov_b32 v{ACC+j}, 0")
    def wave_reduce_to_lds(off):
        a(f"    v_add_f32 v{ACC}, v{ACC}, v{ACC+1}")
        a(f"    v_add_f32 v{ACC+2}, v{ACC+2}, v{ACC+3}")
        a(f"    v_add_f32 v{ACC}, v{ACC}, v{ACC+2}")
        for ctl in ["row_shr:1 row_mask:0xf bank_mask:0xf", "row_shr:2 row_mask:0xf bank_mask:0xf",
                    "row_shr:4 row_mask:0xf bank_mask:0xf", "row_shr:8 row_mask:0xf bank_mask:0xf",
                    "row_bcast:15 row_mask:0xa bank_mask:0xf", "row_bcast:31 row_mask:0xc bank_mask:0xf"]:
            a("    s_nop 1")
            a(f"    v_add_f32_dpp v{ACC}, v{ACC}, v{ACC} {ctl}")
        a("    s_mov_b32 exec_lo, 0")
        a("    s_mov_b32 exec_hi, 0x80000000")
        a(f"    ds_write_b32 v2, v{ACC} offset:{off}")
        a("    s_mov_b64 exec, -1")
        a("    s_waitcnt lgkmcnt(0)")
        a("    s_barrier")
    def lds_total(off):
        nrd = (NW + 3) // 4
        if NW < 4:
            raise ValueError
        first = True
        for k in range(nrd):
            dst = RD if k == 0 else SC
            a(f"    ds_read_b128 v[{dst}:{dst+3}], v3 offset:{off+16*k}")
            a("    s_waitcnt lgkmcnt(0)")
            a(f"    v_add_f32 v{dst}, v{dst}, v{dst+1}")
            a(f"    v_add_f32 v{dst+2}, v{dst+2}, v{dst+3}")
            a(f"    v_add_f32 v{dst}, v{dst}, v{dst+2}")
            if k > 0:
                a(f"    v_add_f32 v{RD}, v{RD}, v{dst}")
    zero_acc()
    for i in range(NL):
        a(f"    s_waitcnt vmcnt({NL-1-i})")
        for j in range(4):
            d = D0 + 4*i + j
            t = T0 if j % 2 == 0 else T1
            a(f"    v_lshlrev_b32 v{t}, 16, v{d}")
            a(f"    v_and_b32 v{t+1}, 0xffff0000, v{d}")
            acc = ACC + 2*(j % 2)
            a(f"    v_pk_add_f32 v[{acc}:{acc+1}], v[{acc}:{acc+1}], v[{t}:{t+1}]")
    wave_reduce_to_lds(0)
    lds_total(0)
    a(f"    v_mul_f32 v{NM}, 0xb8000000, v{RD}")
    a(f"    v_mov_b32 v{NM+1}, v{NM}")
    zero_acc()
    for i in range(ND):
        d = D0 + i
        t = T0 if i % 2 == 0 else T1
        acc = ACC + 2*(i % 2)
        a(f"    v_lshlrev_b32 v{t}, 16, v{d}")
        a(f"    v_and_b32 v{t+1}, 0xffff0000, v{d}")
        a(f"    v_pk_add_f32 v[{t}:{t+1}], v[{t}:{t+1}], v[{NM}:{NM+1}]")
        a(f"    v_pk_fma_f32 v[{acc}:{acc+1}], v[{t}:{t+1}], v[{t}:{t+1}], v[{acc}:{acc+1}]")
    off2 = max(NW, 4) * 4
    wave_reduce_to_lds(off2)
    lds_total(off2)
    a("    s_lshl_b32 s26, s23, 16")
    a("    s_and_b32 s27, s23, 0xffff0000")
    a("    s_lshl_b32 s28, s24, 16")
    a("    s_and_b32 s29, s24, 0xffff0000")
    a("    s_and_b32 s25, s21, 1")
    a("    s_cmp_eq_u32 s25, 1")
    a("    s_cselect_b32 s26, s27, s26             ; g as f32")
    a("    s_cselect_b32 s28, s29, s28             ; b as f32")
    a(f"    v_mov_b32 v{T1}, 0x3727c5ac             ; eps = 1e-5f")
    a(f"    v_fmac_f32 v{T1}, 0x38000000, v{RD}")
    a(f"    v_rsq_f32 v{T1}, v{T1}")
    a("    s_nop 0")
    a(f"    v_mul_f32 v{SC}, s26, v{T1}")
    a(f"    v_mov_b32 v{SC+1}, v{SC}")
    a(f"    v_mov_b32 v{SH}, s28")
    a(f"    v_mov_b32 v{SH+1}, s28")
    for i in range(NL):
        for j in range(4):
            d = D0 + 4*i + j
            t = T0 if j % 2 == 0 else T1
            a(f"    v_lshlrev_b32 v{t}, 16, v{d}")
            a(f"    v_and_b32 v{t+1}, 0xffff0000, v{d}")
            a(f"    v_pk_add_f32 v[{t}:{t+1}], v[{t}:{t+1}], v[{NM}:{NM+1}]")
            a(f"    v_pk_fma_f32 v[{t}:{t+1}], v[{t}:{t+1}], v[{SC}:{SC+1}], v[{SH}:{SH+1}]")
            a(f"    v_cvt_pk_bf16_f32 v{d}, v{t}, v{t+1}")
        a(f"    buffer_store_dwordx4 v[{D0+4*i}:{D0+4*i+3}], v1, s[16:19], s{SOFF+i} offen {sf}")
    a("L_end:")
    a("    s_endpgm")
    a('.section .rodata,"a"')
    a(".p2align 6")
    a(".amdhsa_kernel standalone__instancenorm__prompt_kernel")
    a(f"  .amdhsa_next_free_vgpr {nvgpr}")
    a(f"  .amdhsa_next_free_sgpr {max(SOFF+NL, 40)}")
    a(f"  .amdhsa_accum_offset {(nvgpr+3)//4*4}")
    a("  .amdhsa_group_segment_fixed_size 0")
    a("  .amdhsa_kernarg_size 48")
    a("  .amdhsa_user_sgpr_count 2")
    a("  .amdhsa_user_sgpr_kernarg_segment_ptr 1")
    a("  .amdhsa_system_sgpr_workgroup_id_x 1")
    a(".end_amdhsa_kernel")
    return "\n".join(o) + "\n"

if __name__ == "__main__":
    T = int(sys.argv[1]) if len(sys.argv) > 1 else 256
    out = sys.argv[2] if len(sys.argv) > 2 else "standalone__instancenorm__prompt.s"
    lf = sys.argv[3] if len(sys.argv) > 3 else ""; sf = sys.argv[4] if len(sys.argv) > 4 else ""
    open(out, "w").write(gen(T, lf, sf))
    print("wrote", out)
```

```python
import re, sys
src = open(sys.argv[1]).read()
lines = src.split("\n")
out = []
nv = int(re.search(r"next_free_vgpr (\d+)", src).group(1))
VA, VB = nv, nv + 1
nv2 = nv + 2
bar = 0
for ln in lines:
    if ln.strip() == "s_cbranch_scc1 L_end":
        out.append(ln)
        out.append("    s_memrealtime s[60:61]")
        out.append("    s_load_dwordx2 s[68:69], s[0:1], 32")
        continue
    if ln.strip() == "s_barrier":
        out.append(ln)
        bar += 1
        out.append(f"    s_memrealtime s[{60+2*bar}:{61+2*bar}]")
        continue
    if ln.strip() == "L_end:":
        out.append("    s_waitcnt vmcnt(0) lgkmcnt(0)")
        out.append("    s_memrealtime s[66:67]")
        out.append("    s_waitcnt lgkmcnt(0)")
        out.append("    s_mov_b32 s72, s68")
        out.append("    s_and_b32 s73, s69, 0xffff")
        out.append("    s_mov_b32 s74, 256")
        out.append("    s_mov_b32 s75, 0x00020000")
        out.append(f"    v_mov_b32 v{VB}, 0")
        out.append("    s_mov_b64 exec, 1")
        out.append(f"    v_mov_b32 v{VA}, s60")
        out.append(f"    v_not_b32 v{VA}, v{VA}")
        out.append(f"    buffer_atomic_umax v{VA}, v{VB}, s[72:75], 0 offen offset:0")
        out.append(f"    v_mov_b32 v{VA}, s66")
        out.append(f"    buffer_atomic_umax v{VA}, v{VB}, s[72:75], 0 offen offset:4")
        out.append("    s_mov_b64 exec, -1")
        out.append("    v_cmp_eq_u32 vcc, 0, v0")
        out.append("    s_and_b64 exec, vcc, 1")
        out.append("    s_cbranch_execz L_stdone")
        out.append("    s_cmp_eq_u32 s2, 0")
        out.append("    s_cbranch_scc1 L_st0")
        out.append("    s_cmp_eq_u32 s2, 895")
        out.append("    s_cbranch_scc1 L_st1")
        out.append("    s_branch L_stdone")
        for lab, base in (("L_st0", 16), ("L_st1", 32)):
            out.append(f"{lab}:")
            for k, sr in enumerate((60, 62, 64, 66)):
                out.append(f"    v_mov_b32 v{VA}, s{sr}")
                out.append(f"    buffer_store_dword v{VA}, v{VB}, s[72:75], 0 offen offset:{base+4*k}")
            out.append("    s_branch L_stdone")
        out.append("L_stdone:")
        out.append("    s_waitcnt vmcnt(0)")
        out.append("    s_endpgm")
        out.append("L_end:")
        continue
    out.append(ln)
txt = "\n".join(out)
txt = re.sub(r"next_free_vgpr \d+", f"next_free_vgpr {nv2}", txt)
txt = re.sub(r"accum_offset \d+", f"accum_offset {(nv2+3)//4*4}", txt)
txt = re.sub(r"next_free_sgpr \d+", "next_free_sgpr 80", txt)
open(sys.argv[2], "w").write(txt)
```

```python
import sys
sys.path.insert(0, 'gen')
from gen_v1 import HEADER

def gen(mapping="m224", lf="", sf=""):
    T = 1024; TI = 256
    NELEM = 32768
    NWI = TI // 64
    ND = NELEM // 2 // TI
    NL = ND // 4
    step = TI * 16
    lds = 16 * 8
    NWG = 224 if mapping == "m224" else 256
    D0 = 4
    TMP = D0 + ND
    A1 = TMP; A2 = TMP + 2; T0 = TMP + 4; T1 = TMP + 6; SC = TMP + 8; SH = TMP + 10; RD = TMP + 12
    nvgpr = TMP + 16
    SOFF = 44
    NREC = 2*448*32768*2
    o = []; a = o.append
    a(HEADER + f"; @launch grid=({NWG},1,1) block=({T},1,1) lds={lds}")
    a('.amdgcn_target "amdgcn-amd-amdhsa--gfx950"')
    a(".text"); a(".globl standalone__instancenorm__prompt_kernel"); a(".p2align 8")
    a(".type standalone__instancenorm__prompt_kernel,@function")
    a("standalone__instancenorm__prompt_kernel:")
    a(f"    s_cmp_ge_u32 s2, {NWG}")
    a("    s_cbranch_scc1 L_end")
    a("    s_load_dwordx4 s[4:7], s[0:1], 0        ; x -> s[4:5], g -> s[6:7]")
    a("    s_load_dwordx4 s[8:11], s[0:1], 16      ; b -> s[8:9], out -> s[10:11]")
    a("    v_readfirstlane_b32 s30, v0")
    a("    v_lshrrev_b32 v2, 6, v0")
    a("    v_and_b32 v1, 0xff, v0")
    a("    v_lshlrev_b32 v1, 4, v1")
    a("    v_lshrrev_b32 v3, 8, v0")
    a("    v_lshlrev_b32 v3, 5, v3")
    a("    v_lshlrev_b32 v2, 3, v2")
    a("    s_lshr_b32 s31, s30, 8")
    if mapping == "m224":
        a("    s_lshl_b32 s3, s2, 2")
        a("    s_add_u32 s3, s3, s31")
    else:
        a("    s_lshr_b32 s3, s2, 1")
        a("    s_mul_i32 s3, s3, 7")
        a("    s_and_b32 s25, s2, 1")
        a("    s_lshl_b32 s21, s25, 2")
        a("    s_add_u32 s3, s3, s21")
        a("    s_add_u32 s3, s3, s31")
        a("    s_add_u32 s25, s25, s31")
        a("    s_cmp_ge_u32 s25, 4")
        a("    s_cbranch_scc1 L_end")
    a("    s_cmp_ge_u32 s3, 896")
    a("    s_cbranch_scc1 L_end")
    a("    s_lshl_b32 s20, s3, 16")
    a("    v_add_u32 v1, s20, v1")
    a("    s_sub_u32 s21, s3, 448")
    a("    s_cmp_ge_u32 s3, 448")
    a("    s_cselect_b32 s21, s21, s3              ; channel c")
    a("    s_lshr_b32 s22, s21, 1")
    a("    s_lshl_b32 s22, s22, 2")
    a("    s_min_u32 s22, s22, 892")
    a("    s_waitcnt lgkmcnt(0)")
    a("    s_mov_b32 s12, s4")
    a("    s_and_b32 s13, s5, 0xffff")
    a(f"    s_mov_b32 s14, {NREC}")
    a("    s_mov_b32 s15, 0x00020000")
    a("    s_mov_b32 s16, s10")
    a("    s_and_b32 s17, s11, 0xffff")
    a(f"    s_mov_b32 s18, {NREC}")
    a("    s_mov_b32 s19, 0x00020000")
    a("    s_buffer_load_dword s40, s[12:15], s20")
    a("    s_load_dword s23, s[6:7], s22           ; g pair")
    a("    s_load_dword s24, s[8:9], s22           ; b pair")
    for i in range(NL): a(f"    s_mov_b32 s{SOFF+i}, {i*step}")
    for i in range(NL):
        a(f"    buffer_load_dwordx4 v[{D0+4*i}:{D0+4*i+3}], v1, s[12:15], s{SOFF+i} offen {lf}")
    for r in (A1, A1+1, A2, A2+1): a(f"    v_mov_b32 v{r}, 0")
    a("    s_waitcnt lgkmcnt(0)")
    a("    s_lshl_b32 s40, s40, 16                 ; K as f32")
    a("    s_xor_b32 s42, s40, 0x80000000          ; -K")
    a("    s_mov_b32 s43, s42")
    a("    s_lshl_b32 s26, s23, 16")
    a("    s_and_b32 s27, s23, 0xffff0000")
    a("    s_lshl_b32 s28, s24, 16")
    a("    s_and_b32 s29, s24, 0xffff0000")
    a("    s_and_b32 s25, s21, 1")
    a("    s_cmp_eq_u32 s25, 1")
    a("    s_cselect_b32 s26, s27, s26             ; g")
    a("    s_cselect_b32 s28, s29, s28             ; b")
    for i in range(NL):
        a(f"    s_waitcnt vmcnt({NL-1-i})")
        for j in range(4):
            d = D0 + 4*i + j
            t = T0 if j % 2 == 0 else T1
            a(f"    v_lshlrev_b32 v{t}, 16, v{d}")
            a(f"    v_and_b32 v{t+1}, 0xffff0000, v{d}")
            a(f"    v_pk_add_f32 v[{t}:{t+1}], v[{t}:{t+1}], s[42:43]")
            a(f"    v_pk_add_f32 v[{A1}:{A1+1}], v[{A1}:{A1+1}], v[{t}:{t+1}]")
            a(f"    v_pk_fma_f32 v[{A2}:{A2+1}], v[{t}:{t+1}], v[{t}:{t+1}], v[{A2}:{A2+1}]")
    a(f"    v_add_f32 v{A1}, v{A1}, v{A1+1}")
    a(f"    v_add_f32 v{A2}, v{A2}, v{A2+1}")
    a(f"    v_mov_b32 v{A1+1}, v{A2}")
    a("    s_nop 0")
    for ctl in ["row_shr:1 row_mask:0xf bank_mask:0xf", "row_shr:2 row_mask:0xf bank_mask:0xf",
                "row_shr:4 row_mask:0xf bank_mask:0xf", "row_shr:8 row_mask:0xf bank_mask:0xf",
                "row_bcast:15 row_mask:0xa bank_mask:0xf", "row_bcast:31 row_mask:0xc bank_mask:0xf"]:
        a(f"    v_add_f32_dpp v{A1}, v{A1}, v{A1} {ctl}")
        a(f"    v_add_f32_dpp v{A1+1}, v{A1+1}, v{A1+1} {ctl}")
        a("    s_nop 0")
    a("    s_mov_b32 exec_lo, 0")
    a("    s_mov_b32 exec_hi, 0x80000000")
    a(f"    ds_write_b64 v2, v[{A1}:{A1+1}]")
    a("    s_mov_b64 exec, -1")
    a("    s_waitcnt lgkmcnt(0)")
    a("    s_barrier")
    a(f"    ds_read_b128 v[{RD}:{RD+3}], v3 offset:0")
    a(f"    ds_read_b128 v[{SC}:{SC+3}], v3 offset:16")
    a("    s_waitcnt lgkmcnt(0)")
    a(f"    v_add_f32 v{A1}, v{RD}, v{RD+2}")
    a(f"    v_add_f32 v{A2}, v{RD+1}, v{RD+3}")
    a(f"    v_add_f32 v{A1}, v{A1}, v{SC}")
    a(f"    v_add_f32 v{A2}, v{A2}, v{SC+1}")
    a(f"    v_add_f32 v{A1}, v{A1}, v{SC+2}")
    a(f"    v_add_f32 v{A2}, v{A2}, v{SC+3}")
    a(f"    v_mul_f32 v{T0}, 0x38000000, v{A1}       ; m' = S1 * 2^-15")
    a(f"    v_mul_f32 v{T0+1}, v{T0}, v{T0}          ; m'^2")
    a(f"    v_mov_b32 v{T1+1}, 0x38000000")
    a(f"    v_fma_f32 v{T1}, v{A2}, v{T1+1}, -v{T0+1} ; var")
    a(f"    v_max_f32 v{T1}, 0, v{T1}")
    a(f"    v_add_f32 v{T1}, 0x3727c5ac, v{T1}       ; + eps")
    a(f"    v_rsq_f32 v{T1}, v{T1}")
    a(f"    v_add_f32 v{T0}, s40, v{T0}              ; mean")
    a(f"    v_mul_f32 v{SC}, s26, v{T1}")
    a(f"    v_mov_b32 v{SH}, s28")
    a(f"    v_mov_b32 v{SC+1}, v{SC}")
    a(f"    v_fma_f32 v{SH}, -v{T0}, v{SC}, v{SH}")
    a(f"    v_mov_b32 v{SH+1}, v{SH}")
    for i in range(NL):
        for j in range(4):
            d = D0 + 4*i + j
            t = T0 if j % 2 == 0 else T1
            a(f"    v_lshlrev_b32 v{t}, 16, v{d}")
            a(f"    v_and_b32 v{t+1}, 0xffff0000, v{d}")
            a(f"    v_pk_fma_f32 v[{t}:{t+1}], v[{t}:{t+1}], v[{SC}:{SC+1}], v[{SH}:{SH+1}]")
            a(f"    v_cvt_pk_bf16_f32 v{d}, v{t}, v{t+1}")
        a(f"    buffer_store_dwordx4 v[{D0+4*i}:{D0+4*i+3}], v1, s[16:19], s{SOFF+i} offen {sf}")
    a("L_end:")
    a("    s_endpgm")
    a('.section .rodata,"a"'); a(".p2align 6")
    a(".amdhsa_kernel standalone__instancenorm__prompt_kernel")
    a(f"  .amdhsa_next_free_vgpr {nvgpr}")
    a(f"  .amdhsa_next_free_sgpr {SOFF+NL}")
    a(f"  .amdhsa_accum_offset {(nvgpr+3)//4*4}")
    a("  .amdhsa_group_segment_fixed_size 0"); a("  .amdhsa_kernarg_size 48"); a("  .amdhsa_user_sgpr_count 2")
    a("  .amdhsa_user_sgpr_kernarg_segment_ptr 1"); a("  .amdhsa_system_sgpr_workgroup_id_x 1"); a(".end_amdhsa_kernel")
    return "\n".join(o) + "\n"

if __name__ == "__main__":
    mapping = sys.argv[1]; out = sys.argv[2]
    lf = sys.argv[3] if len(sys.argv) > 3 else ""; sf = sys.argv[4] if len(sys.argv) > 4 else ""
    open(out, "w").write(gen(mapping, lf, sf)); print("wrote", out)
```

```python
import sys
sys.path.insert(0, 'gen')
from gen_v1 import HEADER

def gen(WPI=2, IPW=4, lf="", sf=""):
    TI = 64 * WPI
    T = TI * IPW
    NELEM = 32768
    ND = NELEM // 2 // TI
    NL = ND // 4
    step = TI * 16
    NWAVE = WPI * IPW
    lds = max(NWAVE * 8, 16)
    assert 896 % IPW == 0
    NWG = 896 // IPW
    D0 = 4
    TMP = D0 + ND
    A1 = TMP; A2 = TMP + 2; T0 = TMP + 4; T1 = TMP + 6; SC = TMP + 8; SH = TMP + 10; RD = TMP + 12
    nvgpr = TMP + 16
    SOFF = 40
    NREC = 2*448*32768*2
    lg = lambda v: v.bit_length() - 1
    o = []; a = o.append
    a(HEADER + f"; @launch grid=({NWG},1,1) block=({T},1,1) lds={lds}")
    a('.amdgcn_target "amdgcn-amd-amdhsa--gfx950"')
    a(".text"); a(".globl standalone__instancenorm__prompt_kernel"); a(".p2align 8")
    a(".type standalone__instancenorm__prompt_kernel,@function")
    a("standalone__instancenorm__prompt_kernel:")
    a(f"    s_cmp_ge_u32 s2, {NWG}")
    a("    s_cbranch_scc1 L_end")
    a("    s_load_dwordx4 s[4:7], s[0:1], 0        ; x -> s[4:5], g -> s[6:7]")
    a("    s_load_dwordx4 s[8:11], s[0:1], 16      ; b -> s[8:9], out -> s[10:11]")
    a("    v_readfirstlane_b32 s30, v0")
    a("    v_lshrrev_b32 v2, 6, v0")
    a(f"    v_and_b32 v1, {TI-1}, v0")
    a("    v_lshlrev_b32 v1, 4, v1")
    a(f"    v_lshrrev_b32 v3, {lg(TI)}, v0")
    a(f"    v_lshlrev_b32 v3, {lg(WPI*8)}, v3")
    a("    v_lshlrev_b32 v2, 3, v2")
    a(f"    s_lshr_b32 s31, s30, {lg(TI)}")
    a(f"    s_mul_i32 s3, s2, {IPW}")
    a("    s_add_u32 s3, s3, s31                   ; instance")
    a("    s_cmp_ge_u32 s3, 896")
    a("    s_cbranch_scc1 L_end")
    a("    s_lshl_b32 s20, s3, 16")
    a("    v_add_u32 v1, s20, v1")
    a("    s_sub_u32 s21, s3, 448")
    a("    s_cmp_ge_u32 s3, 448")
    a("    s_cselect_b32 s21, s21, s3              ; channel c")
    a("    s_lshr_b32 s22, s21, 1")
    a("    s_lshl_b32 s22, s22, 2")
    a("    s_min_u32 s22, s22, 892")
    a("    s_waitcnt lgkmcnt(0)")
    a("    s_mov_b32 s12, s4"); a("    s_and_b32 s13, s5, 0xffff"); a(f"    s_mov_b32 s14, {NREC}"); a("    s_mov_b32 s15, 0x00020000")
    a("    s_mov_b32 s16, s10"); a("    s_and_b32 s17, s11, 0xffff"); a(f"    s_mov_b32 s18, {NREC}"); a("    s_mov_b32 s19, 0x00020000")
    a("    s_buffer_load_dword s32, s[12:15], s20")
    a("    s_load_dword s23, s[6:7], s22           ; g pair")
    a("    s_load_dword s24, s[8:9], s22           ; b pair")
    def off(i):
        tot = i * step
        return tot // 4096 * 4096 if step < 4096 else tot, tot % 4096 if step < 4096 else 0
    sregs = {}
    for i in range(NL):
        so, io = off(i)
        if so not in sregs:
            sregs[so] = SOFF + len(sregs); a(f"    s_mov_b32 s{sregs[so]}, {so}")
    def mem(op, i, srd, fl):
        so, io = off(i)
        a(f"    {op} v[{D0+4*i}:{D0+4*i+3}], v1, s[{srd}:{srd+3}], s{sregs[so]} offen offset:{io} {fl}")
    for i in range(NL): mem("buffer_load_dwordx4", i, 12, lf)
    for r in (A1, A1+1, A2, A2+1): a(f"    v_mov_b32 v{r}, 0")
    a("    s_waitcnt lgkmcnt(0)")
    a("    s_lshl_b32 s32, s32, 16                 ; K as f32")
    a("    s_xor_b32 s34, s32, 0x80000000          ; -K")
    a("    s_mov_b32 s35, s34")
    a("    s_lshl_b32 s26, s23, 16"); a("    s_and_b32 s27, s23, 0xffff0000")
    a("    s_lshl_b32 s28, s24, 16"); a("    s_and_b32 s29, s24, 0xffff0000")
    a("    s_and_b32 s25, s21, 1")
    a("    s_cmp_eq_u32 s25, 1")
    a("    s_cselect_b32 s26, s27, s26             ; g")
    a("    s_cselect_b32 s28, s29, s28             ; b")
    for i in range(NL):
        a(f"    s_waitcnt vmcnt({min(NL-1-i, 63)})")
        for j in range(4):
            d = D0 + 4*i + j
            t = T0 if j % 2 == 0 else T1
            a(f"    v_lshlrev_b32 v{t}, 16, v{d}")
            a(f"    v_and_b32 v{t+1}, 0xffff0000, v{d}")
            a(f"    v_pk_add_f32 v[{t}:{t+1}], v[{t}:{t+1}], s[34:35]")
            a(f"    v_pk_add_f32 v[{A1}:{A1+1}], v[{A1}:{A1+1}], v[{t}:{t+1}]")
            a(f"    v_pk_fma_f32 v[{A2}:{A2+1}], v[{t}:{t+1}], v[{t}:{t+1}], v[{A2}:{A2+1}]")
    a(f"    v_add_f32 v{A1}, v{A1}, v{A1+1}")
    a(f"    v_add_f32 v{A2}, v{A2}, v{A2+1}")
    a(f"    v_mov_b32 v{A1+1}, v{A2}")
    a("    s_nop 0")
    for ctl in ["row_shr:1 row_mask:0xf bank_mask:0xf", "row_shr:2 row_mask:0xf bank_mask:0xf",
                "row_shr:4 row_mask:0xf bank_mask:0xf", "row_shr:8 row_mask:0xf bank_mask:0xf",
                "row_bcast:15 row_mask:0xa bank_mask:0xf", "row_bcast:31 row_mask:0xc bank_mask:0xf"]:
        a(f"    v_add_f32_dpp v{A1}, v{A1}, v{A1} {ctl}")
        a(f"    v_add_f32_dpp v{A1+1}, v{A1+1}, v{A1+1} {ctl}")
        a("    s_nop 0")
    a("    s_mov_b32 exec_lo, 0")
    a("    s_mov_b32 exec_hi, 0x80000000")
    a(f"    ds_write_b64 v2, v[{A1}:{A1+1}]")
    a("    s_mov_b64 exec, -1")
    a("    s_waitcnt lgkmcnt(0)")
    a("    s_barrier")
    if WPI == 4:
        a(f"    ds_read_b128 v[{RD}:{RD+3}], v3 offset:0")
        a(f"    ds_read_b128 v[{SC}:{SC+3}], v3 offset:16")
        a("    s_waitcnt lgkmcnt(0)")
        a(f"    v_add_f32 v{A1}, v{RD}, v{RD+2}"); a(f"    v_add_f32 v{A2}, v{RD+1}, v{RD+3}")
        a(f"    v_add_f32 v{A1}, v{A1}, v{SC}"); a(f"    v_add_f32 v{A2}, v{A2}, v{SC+1}")
        a(f"    v_add_f32 v{A1}, v{A1}, v{SC+2}"); a(f"    v_add_f32 v{A2}, v{A2}, v{SC+3}")
    elif WPI == 2:
        a(f"    ds_read_b128 v[{RD}:{RD+3}], v3 offset:0")
        a("    s_waitcnt lgkmcnt(0)")
        a(f"    v_add_f32 v{A1}, v{RD}, v{RD+2}"); a(f"    v_add_f32 v{A2}, v{RD+1}, v{RD+3}")
    else:
        a(f"    ds_read_b64 v[{RD}:{RD+1}], v3 offset:0")
        a("    s_waitcnt lgkmcnt(0)")
        a(f"    v_mov_b32 v{A1}, v{RD}"); a(f"    v_mov_b32 v{A2}, v{RD+1}")
    a(f"    v_mul_f32 v{T0}, 0x38000000, v{A1}       ; m' = S1 * 2^-15")
    a(f"    v_mul_f32 v{T0+1}, v{T0}, v{T0}          ; m'^2")
    a(f"    v_mov_b32 v{T1+1}, 0x38000000")
    a(f"    v_fma_f32 v{T1}, v{A2}, v{T1+1}, -v{T0+1} ; var")
    a(f"    v_max_f32 v{T1}, 0, v{T1}")
    a(f"    v_add_f32 v{T1}, 0x3727c5ac, v{T1}       ; + eps")
    a(f"    v_rsq_f32 v{T1}, v{T1}")
    a(f"    v_add_f32 v{T0}, s32, v{T0}              ; mean")
    a(f"    v_mul_f32 v{SC}, s26, v{T1}")
    a(f"    v_mov_b32 v{SH}, s28")
    a(f"    v_mov_b32 v{SC+1}, v{SC}")
    a(f"    v_fma_f32 v{SH}, -v{T0}, v{SC}, v{SH}")
    a(f"    v_mov_b32 v{SH+1}, v{SH}")
    for i in range(NL):
        for j in range(4):
            d = D0 + 4*i + j
            t = T0 if j % 2 == 0 else T1
            a(f"    v_lshlrev_b32 v{t}, 16, v{d}")
            a(f"    v_and_b32 v{t+1}, 0xffff0000, v{d}")
            a(f"    v_pk_fma_f32 v[{t}:{t+1}], v[{t}:{t+1}], v[{SC}:{SC+1}], v[{SH}:{SH+1}]")
            a(f"    v_cvt_pk_bf16_f32 v{d}, v{t}, v{t+1}")
        mem("buffer_store_dwordx4", i, 16, sf)
    a("L_end:")
    a("    s_endpgm")
    a('.section .rodata,"a"'); a(".p2align 6")
    a(".amdhsa_kernel standalone__instancenorm__prompt_kernel")
    a(f"  .amdhsa_next_free_vgpr {nvgpr}")
    a(f"  .amdhsa_next_free_sgpr {SOFF+len(sregs)}")
    a(f"  .amdhsa_accum_offset {(nvgpr+3)//4*4}")
    a("  .amdhsa_group_segment_fixed_size 0"); a("  .amdhsa_kernarg_size 48"); a("  .amdhsa_user_sgpr_count 2")
    a("  .amdhsa_user_sgpr_kernarg_segment_ptr 1"); a("  .amdhsa_system_sgpr_workgroup_id_x 1"); a(".end_amdhsa_kernel")
    return "\n".join(o) + "\n"

if __name__ == "__main__":
    WPI = int(sys.argv[1]); IPW = int(sys.argv[2]); out = sys.argv[3]
    lf = sys.argv[4] if len(sys.argv) > 4 else ""; sf = sys.argv[5] if len(sys.argv) > 5 else ""
    open(out, "w").write(gen(WPI, IPW, lf, sf)); print("wrote", out)
```

```python
import sys
sys.path.insert(0, 'gen')
from gen_v1 import HEADER

def gen(WPI=2, IPW=4, lf="", sf="", perm="id", ldsz=None):
    TI = 64 * WPI
    T = TI * IPW
    NELEM = 32768
    ND = NELEM // 2 // TI
    NL = ND // 4
    step = TI * 16
    NWAVE = WPI * IPW
    lds = ldsz or max(NWAVE * 8, 16)
    assert 896 % IPW == 0
    NWG = 896 // IPW
    D0 = 4
    TMP = D0 + ND
    A1 = TMP; A2 = TMP + 2; T0 = TMP + 4; T1 = TMP + 6; SC = TMP + 8; SH = TMP + 10; RD = TMP + 12
    nvgpr = TMP + 16
    SOFF = 40
    NREC = 2*448*32768*2
    lg = lambda v: v.bit_length() - 1
    o = []; a = o.append
    a(HEADER + f"; @launch grid=({NWG},1,1) block=({T},1,1) lds={lds}")
    a('.amdgcn_target "amdgcn-amd-amdhsa--gfx950"')
    a(".text"); a(".globl standalone__instancenorm__prompt_kernel"); a(".p2align 8")
    a(".type standalone__instancenorm__prompt_kernel,@function")
    a("standalone__instancenorm__prompt_kernel:")
    a(f"    s_cmp_ge_u32 s2, {NWG}")
    a("    s_cbranch_scc1 L_end")
    a("    s_load_dwordx4 s[4:7], s[0:1], 0        ; x -> s[4:5], g -> s[6:7]")
    a("    s_load_dwordx4 s[8:11], s[0:1], 16      ; b -> s[8:9], out -> s[10:11]")
    a("    v_readfirstlane_b32 s30, v0")
    a("    v_lshrrev_b32 v2, 6, v0")
    a(f"    v_and_b32 v1, {TI-1}, v0")
    a("    v_lshlrev_b32 v1, 4, v1")
    a(f"    v_lshrrev_b32 v3, {lg(TI)}, v0")
    a(f"    v_lshlrev_b32 v3, {lg(WPI*8)}, v3")
    a("    v_lshlrev_b32 v2, 3, v2")
    a(f"    s_lshr_b32 s31, s30, {lg(TI)}")
    if perm == "xcd":
        assert NWG % 8 == 0
        a("    s_and_b32 s3, s2, 7")
        a(f"    s_mul_i32 s3, s3, {NWG//8}")
        a("    s_lshr_b32 s21, s2, 3")
        a("    s_add_u32 s3, s3, s21                   ; workgroups of one XCD (wg % 8) take a contiguous block")
        a(f"    s_mul_i32 s3, s3, {IPW}")
    else:
        a(f"    s_mul_i32 s3, s2, {IPW}")
    a("    s_add_u32 s3, s3, s31                   ; instance")
    a("    s_cmp_ge_u32 s3, 896")
    a("    s_cbranch_scc1 L_end")
    a("    s_lshl_b32 s20, s3, 16")
    a("    v_add_u32 v1, s20, v1")
    a("    s_sub_u32 s21, s3, 448")
    a("    s_cmp_ge_u32 s3, 448")
    a("    s_cselect_b32 s21, s21, s3              ; channel c")
    a("    s_lshr_b32 s22, s21, 1")
    a("    s_lshl_b32 s22, s22, 2")
    a("    s_min_u32 s22, s22, 892")
    a("    s_waitcnt lgkmcnt(0)")
    a("    s_mov_b32 s12, s4"); a("    s_and_b32 s13, s5, 0xffff"); a(f"    s_mov_b32 s14, {NREC}"); a("    s_mov_b32 s15, 0x00020000")
    a("    s_mov_b32 s16, s10"); a("    s_and_b32 s17, s11, 0xffff"); a(f"    s_mov_b32 s18, {NREC}"); a("    s_mov_b32 s19, 0x00020000")
    a("    s_buffer_load_dword s32, s[12:15], s20")
    a("    s_load_dword s23, s[6:7], s22           ; g pair")
    a("    s_load_dword s24, s[8:9], s22           ; b pair")
    def off(i):
        tot = i * step
        return tot // 4096 * 4096 if step < 4096 else tot, tot % 4096 if step < 4096 else 0
    sregs = {}
    for i in range(NL):
        so, io = off(i)
        if so not in sregs:
            sregs[so] = SOFF + len(sregs); a(f"    s_mov_b32 s{sregs[so]}, {so}")
    def mem(op, i, srd, fl):
        so, io = off(i)
        a(f"    {op} v[{D0+4*i}:{D0+4*i+3}], v1, s[{srd}:{srd+3}], s{sregs[so]} offen offset:{io} {fl}")
    for i in range(NL): mem("buffer_load_dwordx4", i, 12, lf)
    for r in (A1, A1+1, A2, A2+1): a(f"    v_mov_b32 v{r}, 0")
    a("    s_waitcnt lgkmcnt(0)")
    a("    s_lshl_b32 s32, s32, 16                 ; K as f32")
    a("    s_xor_b32 s34, s32, 0x80000000          ; -K")
    a("    s_mov_b32 s35, s34")
    a("    s_lshl_b32 s26, s23, 16"); a("    s_and_b32 s27, s23, 0xffff0000")
    a("    s_lshl_b32 s28, s24, 16"); a("    s_and_b32 s29, s24, 0xffff0000")
    a("    s_and_b32 s25, s21, 1")
    a("    s_cmp_eq_u32 s25, 1")
    a("    s_cselect_b32 s26, s27, s26             ; g")
    a("    s_cselect_b32 s28, s29, s28             ; b")
    for i in range(NL):
        a(f"    s_waitcnt vmcnt({min(NL-1-i, 63)})")
        for j in range(4):
            d = D0 + 4*i + j
            t = T0 if j % 2 == 0 else T1
            a(f"    v_lshlrev_b32 v{t}, 16, v{d}")
            a(f"    v_and_b32 v{t+1}, 0xffff0000, v{d}")
            a(f"    v_pk_add_f32 v[{t}:{t+1}], v[{t}:{t+1}], s[34:35]")
            a(f"    v_pk_add_f32 v[{A1}:{A1+1}], v[{A1}:{A1+1}], v[{t}:{t+1}]")
            a(f"    v_pk_fma_f32 v[{A2}:{A2+1}], v[{t}:{t+1}], v[{t}:{t+1}], v[{A2}:{A2+1}]")
    a(f"    v_add_f32 v{A1}, v{A1}, v{A1+1}")
    a(f"    v_add_f32 v{A2}, v{A2}, v{A2+1}")
    a(f"    v_mov_b32 v{A1+1}, v{A2}")
    a("    s_nop 0")
    for ctl in ["row_shr:1 row_mask:0xf bank_mask:0xf", "row_shr:2 row_mask:0xf bank_mask:0xf",
                "row_shr:4 row_mask:0xf bank_mask:0xf", "row_shr:8 row_mask:0xf bank_mask:0xf",
                "row_bcast:15 row_mask:0xa bank_mask:0xf", "row_bcast:31 row_mask:0xc bank_mask:0xf"]:
        a(f"    v_add_f32_dpp v{A1}, v{A1}, v{A1} {ctl}")
        a(f"    v_add_f32_dpp v{A1+1}, v{A1+1}, v{A1+1} {ctl}")
        a("    s_nop 0")
    a("    s_mov_b32 exec_lo, 0")
    a("    s_mov_b32 exec_hi, 0x80000000")
    a(f"    ds_write_b64 v2, v[{A1}:{A1+1}]")
    a("    s_mov_b64 exec, -1")
    a("    s_waitcnt lgkmcnt(0)")
    a("    s_barrier")
    if WPI >= 4:
        first = True
        for q in range(WPI // 2):
            dst = RD if q % 2 == 0 else SC
            a(f"    ds_read_b128 v[{dst}:{dst+3}], v3 offset:{16*q}")
            if q % 2 == 1 or q == WPI // 2 - 1:
                a("    s_waitcnt lgkmcnt(0)")
                for dd in ([RD, SC] if q % 2 == 1 else [RD]):
                    if first:
                        a(f"    v_add_f32 v{A1}, v{dd}, v{dd+2}"); a(f"    v_add_f32 v{A2}, v{dd+1}, v{dd+3}"); first = False
                    else:
                        a(f"    v_add_f32 v{A1}, v{A1}, v{dd}"); a(f"    v_add_f32 v{A2}, v{A2}, v{dd+1}")
                        a(f"    v_add_f32 v{A1}, v{A1}, v{dd+2}"); a(f"    v_add_f32 v{A2}, v{A2}, v{dd+3}")
    elif WPI == 2:
        a(f"    ds_read_b128 v[{RD}:{RD+3}], v3 offset:0")
        a("    s_waitcnt lgkmcnt(0)")
        a(f"    v_add_f32 v{A1}, v{RD}, v{RD+2}"); a(f"    v_add_f32 v{A2}, v{RD+1}, v{RD+3}")
    else:
        a(f"    ds_read_b64 v[{RD}:{RD+1}], v3 offset:0")
        a("    s_waitcnt lgkmcnt(0)")
        a(f"    v_mov_b32 v{A1}, v{RD}"); a(f"    v_mov_b32 v{A2}, v{RD+1}")
    a(f"    v_mul_f32 v{T0}, 0x38000000, v{A1}       ; m' = S1 * 2^-15")
    a(f"    v_mul_f32 v{T0+1}, v{T0}, v{T0}          ; m'^2")
    a(f"    v_mov_b32 v{T1+1}, 0x38000000")
    a(f"    v_fma_f32 v{T1}, v{A2}, v{T1+1}, -v{T0+1} ; var")
    a(f"    v_max_f32 v{T1}, 0, v{T1}")
    a(f"    v_add_f32 v{T1}, 0x3727c5ac, v{T1}       ; + eps")
    a(f"    v_rsq_f32 v{T1}, v{T1}")
    a(f"    v_add_f32 v{T0}, s32, v{T0}              ; mean")
    a(f"    v_mul_f32 v{SC}, s26, v{T1}")
    a(f"    v_mov_b32 v{SH}, s28")
    a(f"    v_mov_b32 v{SC+1}, v{SC}")
    a(f"    v_fma_f32 v{SH}, -v{T0}, v{SC}, v{SH}")
    a(f"    v_mov_b32 v{SH+1}, v{SH}")
    for i in range(NL):
        for j in range(4):
            d = D0 + 4*i + j
            t = T0 if j % 2 == 0 else T1
            a(f"    v_lshlrev_b32 v{t}, 16, v{d}")
            a(f"    v_and_b32 v{t+1}, 0xffff0000, v{d}")
            a(f"    v_pk_fma_f32 v[{t}:{t+1}], v[{t}:{t+1}], v[{SC}:{SC+1}], v[{SH}:{SH+1}]")
            a(f"    v_cvt_pk_bf16_f32 v{d}, v{t}, v{t+1}")
        mem("buffer_store_dwordx4", i, 16, sf)
    a("L_end:")
    a("    s_endpgm")
    a('.section .rodata,"a"'); a(".p2align 6")
    a(".amdhsa_kernel standalone__instancenorm__prompt_kernel")
    a(f"  .amdhsa_next_free_vgpr {nvgpr}")
    a(f"  .amdhsa_next_free_sgpr {SOFF+len(sregs)}")
    a(f"  .amdhsa_accum_offset {(nvgpr+3)//4*4}")
    a("  .amdhsa_group_segment_fixed_size 0"); a("  .amdhsa_kernarg_size 48"); a("  .amdhsa_user_sgpr_count 2")
    a("  .amdhsa_user_sgpr_kernarg_segment_ptr 1"); a("  .amdhsa_system_sgpr_workgroup_id_x 1"); a(".end_amdhsa_kernel")
    return "\n".join(o) + "\n"

if __name__ == "__main__":
    WPI = int(sys.argv[1]); IPW = int(sys.argv[2]); out = sys.argv[3]
    lf = sys.argv[4] if len(sys.argv) > 4 else ""; sf = sys.argv[5] if len(sys.argv) > 5 else ""
    perm = sys.argv[6] if len(sys.argv) > 6 else "id"
    ldsz = int(sys.argv[7]) if len(sys.argv) > 7 else None
    open(out, "w").write(gen(WPI, IPW, lf, sf, perm, ldsz)); print("wrote", out)
```
